```python
import torch

def _softmax(x, axis=-1):
    return torch.softmax(x, dim=axis)
def _gelu(x):
    return torch.nn.functional.gelu(x, approximate="tanh")
def _silu(x):
    return torch.nn.functional.silu(x)
def _sigmoid(x):
    return torch.sigmoid(x)
def _layernorm(x, axis=-1, eps=1e-5):
    m = x.mean(dim=axis, keepdim=True)
    v = x.var(dim=axis, keepdim=True, unbiased=False)
    return (x - m) / torch.sqrt(v + eps)
def _scatter_add(tgt, idx, src, axis=0):
    return tgt.clone().index_add_(axis, idx, src)
def _segment_sum(src, seg, n):
    out = torch.zeros((n,) + src.shape[1:], dtype=src.dtype)
    return out.index_add_(0, seg, src)
def _pad(x, pw):
    flat = tuple(v for pair in reversed(pw) for v in pair)
    return torch.nn.functional.pad(x, flat)

kernel_name = 'concat_heads__mha_block_cached__mha_block_cached__near_ridge'

def setup_inputs():

    _w = (lambda a: (lambda t: t.to(torch.bfloat16) if t.is_floating_point() else t)(torch.as_tensor(a)))
    def _A_setup():
        B, Sq, D = 16, 32, 1024
        H, Sk, Dh = 32, 32, 128
        return {
            "x": _w((lambda *s: torch.randn(*s, dtype=torch.bfloat16) * 0.8)(B, Sq, D)),
            "k_cache": _w((lambda *s: torch.randn(*s, dtype=torch.bfloat16) * 0.8)(B, H, Sk, Dh)),
            "v_cache": _w((lambda *s: torch.randn(*s, dtype=torch.bfloat16) * 0.05)(B, H, Sk, Dh)),
            "wq": _w((lambda *s: torch.randn(*s, dtype=torch.bfloat16) * 0.8)(D, H * Dh) * (D ** -0.5)),
            "wo": _w((lambda *s: torch.randn(*s, dtype=torch.bfloat16) * 0.05)(H * Dh, D) * ((H * Dh) ** -0.5)),
        }
    _A_in = _A_setup()

    def _B_setup():
        B, Sq, D = 16, 32, 1024
        H, Sk, Dh = 32, 32, 128
        return {
            "x": _w((lambda *s: torch.randn(*s, dtype=torch.bfloat16) * 0.8)(B, Sq, D)),
            "k_cache": _w((lambda *s: torch.randn(*s, dtype=torch.bfloat16) * 0.8)(B, H, Sk, Dh)),
            "v_cache": _w((lambda *s: torch.randn(*s, dtype=torch.bfloat16) * 0.05)(B, H, Sk, Dh)),
            "wq": _w((lambda *s: torch.randn(*s, dtype=torch.bfloat16) * 0.8)(D, H * Dh) * (D ** -0.5)),
            "wo": _w((lambda *s: torch.randn(*s, dtype=torch.bfloat16) * 0.05)(H * Dh, D) * ((H * Dh) ** -0.5)),
        }
    _B_in = _B_setup()

    return {
        "A_x": _A_in["x"],
        "A_k_cache": _A_in["k_cache"],
        "A_v_cache": _A_in["v_cache"],
        "A_wq": _A_in["wq"],
        "A_wo": _A_in["wo"],
        "B_x": _B_in["x"],
        "B_k_cache": _B_in["k_cache"],
        "B_v_cache": _B_in["v_cache"],
        "B_wq": _B_in["wq"],
        "B_wo": _B_in["wo"],
    }

def reference(A_x, A_k_cache, A_v_cache, A_wq, A_wo, B_x, B_k_cache, B_v_cache, B_wq, B_wo):
    def _A_ref(x, k_cache, v_cache, wq, wo):
        B, Sq, D = x.shape
        H, Dh = 32, 128
        q = (lambda x, *d: x.permute(*d))((x @ wq).reshape(B, Sq, H, Dh), 0, 2, 1, 3)
        scores = torch.einsum("bhqd,bhkd->bhqk", q, k_cache) * (Dh ** -0.5)
        p = _softmax(scores, axis=-1)
        o = torch.einsum("bhqk,bhkd->bhqd", p, v_cache)
        return (lambda x, *d: x.permute(*d))(o, 0, 2, 1, 3).reshape(B, Sq, H * Dh) @ wo

    def _B_ref(x, k_cache, v_cache, wq, wo):
        B, Sq, D = x.shape
        H, Dh = 32, 128
        q = (lambda x, *d: x.permute(*d))((x @ wq).reshape(B, Sq, H, Dh), 0, 2, 1, 3)
        scores = torch.einsum("bhqd,bhkd->bhqk", q, k_cache) * (Dh ** -0.5)
        p = _softmax(scores, axis=-1)
        o = torch.einsum("bhqk,bhkd->bhqd", p, v_cache)
        return (lambda x, *d: x.permute(*d))(o, 0, 2, 1, 3).reshape(B, Sq, H * Dh) @ wo

    a = _A_ref(A_x, A_k_cache, A_v_cache, A_wq, A_wo)
    b = _B_ref(B_x, B_k_cache, B_v_cache, B_wq, B_wo)
    return torch.concatenate([a, b], axis=-1)
```

```python
NAME = 'concat_heads__mha_block_cached__mha_block_cached__near_ridge'

HEADER_COMMENT = """; Kernarg layout for this problem (104 bytes, ptrs only, base s[0:1]):
"""

class Asm:
    def __init__(self):
        self.lines = []
    def __call__(self, s):
        for l in s.split('\n'):
            self.lines.append(l)
    def text(self):
        return '\n'.join(self.lines) + '\n'

def kernel_header(name):
    return f""".text
.globl {name}
.p2align 8
.type {name},@function
{name}:"""

def kernel_desc(name, vgpr, sgpr, accum, wgy=False):
    return f""".section .rodata,"a"
.p2align 6
.amdhsa_kernel {name}
  .amdhsa_next_free_vgpr {vgpr}
  .amdhsa_next_free_sgpr {sgpr}
  .amdhsa_accum_offset {accum}
  .amdhsa_group_segment_fixed_size 0
  .amdhsa_kernarg_size 104
  .amdhsa_user_sgpr_count 2
  .amdhsa_user_sgpr_kernarg_segment_ptr 1
  .amdhsa_system_sgpr_workgroup_id_x 1
{'  .amdhsa_system_sgpr_workgroup_id_y 1' if wgy else ''}
.end_amdhsa_kernel
"""

def single_file(body, grid, block, lds, vgpr, sgpr, accum):
    k = NAME + '_kernel'
    s = HEADER_COMMENT
    s += f"; @launch grid=({grid},1,1) block=({block},1,1) lds={lds}\n"
    s += '.amdgcn_target "amdgcn-amd-amdhsa--gfx950"\n'
    s += kernel_header(k) + '\n' + body + '\n' + kernel_desc(k, vgpr, sgpr, accum)
    return s
```

```python
import sys, re
from asmlib import *

DEF = dict(px='', pwq='', pk='', pv='', pwo='', rot=False, stamps=False, codepf=True, R=5,
           xt=None, t2=None, npre=2, npre2=3, trace=False)

WS_E = 0
WS_F1 = 0x1000
WS_F2 = 0x10000
WS_P = 1 << 20
WS_PART = 4 << 20
WS_TS = 64 << 20
SLOT = 32768

class Sched:
    def __init__(self, a):
        self.a = a; self.lg = []; self.vm = []
    def ds(self, text, tag):
        self.a("    " + text); self.lg.append(tag)
    def vmem(self, text, tag):
        self.a("    " + text); self.vm.append(tag)
    def need_lg(self, tags):
        idx = max([i for i, t in enumerate(self.lg) if t in tags], default=-1)
        if idx >= 0:
            n = min(len(self.lg) - idx - 1, 15)
            self.a(f"    s_waitcnt lgkmcnt({n})")
            self.lg = self.lg[len(self.lg) - n:] if n else []
    def need_vm(self, tags):
        idx = max([i for i, t in enumerate(self.vm) if t in tags], default=-1)
        if idx >= 0:
            n = len(self.vm) - idx - 1
            assert n <= 63, n
            self.a(f"    s_waitcnt vmcnt({n})")
            self.vm = self.vm[idx + 1:]
    def all_lg(self, force=False):
        if self.lg or force:
            self.a("    s_waitcnt lgkmcnt(0)"); self.lg = []

def loop_body(a, sc, body, renumber):
    entry_vm, entry_lg = list(sc.vm), list(sc.lg)
    n0 = len(a.lines)
    for _ in range(3):
        body(); del a.lines[n0:]
        sc.vm = [renumber(t) for t in sc.vm]
    st_vm, st_lg = list(sc.vm), list(sc.lg)
    body()
    end_vm = [renumber(t) for t in sc.vm]
    assert end_vm == st_vm and sc.lg == st_lg, (end_vm, st_vm)
    def younger(q):
        return {t: len(q) - 1 - i for i, t in enumerate(q)}
    for ent, st in ((entry_vm, st_vm), (entry_lg, st_lg)):
        ye, ys = younger(ent), younger(st)
        for t in ye:
            if isinstance(t, str): continue
            assert t in ys and ye[t] >= ys[t], (t, ent, st)

S_A, S_B, S_WS, S_OUT = 8, 12, 16, 20
S_BR, S_HG, S_BG, S_C, S_WAVE = 24, 25, 26, 27, 28
S_SA, S_SB, S_DA, S_DAX, S_DB, S_MKA, S_MKB, S_MA, S_MB = 29, 30, 31, 32, 33, 34, 35, 36, 37
S_BASE, S_NBASE, S_DELTA, S_CNT, S_NONCE = 38, 39, 40, 41, 42
S_SP, S_PH, S_BH, S_M0A, S_M0B = 43, 44, 45, 46, 47
S_F1 = 48
S_F2 = 50
S_FL = 52
S_TMP = 60
S_PTR = 68
S_ST = 86
V_LANE = 1
V_XA, V_WA = 2, 6
V_DA, V_DB = 10, 14
V_DK, V_DV, V_DO = 18, 22, 26
V_KR = 30
V_L16 = 38
V_NONCE = 39
V_T = 40
V_ACC = 64
V_TP = 192
A_FR = 0
A_PF = 40
A_OUT = 64

class Gen:
    def __init__(self, **kw):
        self.o = dict(DEF); self.o.update(kw)
        self.a = Asm(); self.sc = Sched(self.a)
        self.R = self.o['R']
        self.nst = 0
    def stamp(self):
        if self.o['stamps']:
            i = self.nst; self.nst += 1
            assert i < 8
            self.a(f"    s_memrealtime s[{S_ST+2*i}:{S_ST+2*i+1}]")

    def setup(self):
        a = self.a; o = self.o; L = V_LANE; T = V_T
        a(f"""    s_cmp_ge_u32 s2, 256
    s_cbranch_scc1 L_end
    s_and_b32 s3, s2, 4
    s_mul_i32 s3, s3, 10
    s_add_u32 s4, s0, s3
    s_addc_u32 s5, s1, 0
    s_load_dwordx8 s[{S_PTR}:{S_PTR+7}], s[4:5], 0
    s_load_dwordx2 s[{S_PTR+8}:{S_PTR+9}], s[4:5], 32
    s_load_dwordx4 s[{S_PTR+12}:{S_PTR+15}], s[0:1], 80
    s_load_dwordx2 s[{S_PTR+16}:{S_PTR+17}], s[0:1], 96""")
        self.stamp()
        if o['codepf']:
            a(f"""    s_getpc_b64 s[6:7]
    v_lshlrev_b32 v{T}, 7, v0
    v_min_u32 v{T}, L_end-L_pfbase+64, v{T}
L_pfbase:
    global_load_dword v{T+15}, v{T}, s[6:7]""")
            self.sc.vm.append('codepf')
        a(f"""    s_bfe_u32 s{S_BR}, s2, 0x10002
    s_and_b32 s{S_HG}, s2, 3
    s_lshr_b32 s{S_BG}, s2, 6
    s_bfe_u32 s{S_C}, s2, 0x30003
    v_lshrrev_b32 v{T}, 6, v0
    v_and_b32 v{L}, 63, v0
    v_readfirstlane_b32 s{S_WAVE}, v{T}
    s_mov_b32 s{S_A+2}, 0x100000
    s_mov_b32 s{S_A+3}, 0x20000
    s_mov_b32 s{S_B+2}, 0x800000
    s_mov_b32 s{S_B+3}, 0x20000""")
        a(f"""    v_lshrrev_b32 v{T}, 3, v{L}
    v_and_b32 v{T+1}, 7, v{L}
    v_lshrrev_b32 v{T+2}, 4, v{L}
    v_xor_b32 v{T+1}, v{T+1}, v{T+2}
    v_lshlrev_b32 v{T+1}, 4, v{T+1}
    v_lshl_add_u32 v{T+3}, v{T}, 11, v{T+1}
    v_lshl_add_u32 v{T+4}, v{T}, 8, v{T+1}
    s_lshl_b32 s{S_TMP}, s{S_BG}, 2
    s_add_u32 s{S_TMP}, s{S_TMP}, s{S_WAVE}   ; batch
    s_lshl_b32 s{S_TMP+1}, s{S_TMP}, 16
    v_add_u32 v{V_DA}, s{S_TMP+1}, v{T+3}""")
        a(f"    v_xor_b32 v{V_DA+1}, 64, v{V_DA}")
        a(f"    v_add_u32 v{V_DA+2}, {2*(8*2048-1024)}, v{V_DA}")
        a(f"    v_add_u32 v{V_DA+3}, {3*(8*2048-1024)}, v{V_DA+1}")
        a(f"    v_add_u32 v{V_DA+1}, {8*2048-1024}, v{V_DA+1}")
        a(f"""    v_and_b32 v{T+5}, 15, v{L}
    v_lshlrev_b32 v{T+6}, 2, v{T+2}
    v_xor_b32 v{T+6}, v{T+5}, v{T+6}
    v_lshlrev_b32 v{T+6}, 4, v{T+6}
    v_lshl_add_u32 v{T+7}, v{T+2}, 13, v{T+6}
    s_lshl_b32 s{S_TMP+2}, s{S_HG}, 3
    s_add_u32 s{S_TMP+2}, s{S_TMP+2}, s{S_C}   ; head
    s_lshl_b32 s{S_TMP+3}, s{S_TMP+2}, 8
    s_lshl_b32 s{S_TMP+4}, s{S_WAVE}, 17
    s_add_u32 s{S_TMP+3}, s{S_TMP+3}, s{S_TMP+4}
    v_add_u32 v{V_DB}, s{S_TMP+3}, v{T+7}""")
        for i in range(1, 4):
            a(f"    v_add_u32 v{V_DB+i}, {i*(4*8192-1024)}, v{V_DB}")
        a(f"""    s_lshl_b32 s{S_BH}, s{S_TMP}, 5
    s_add_u32 s{S_BH}, s{S_BH}, s{S_TMP+2}     ; b*32+h
    s_lshl_b32 s{S_MA}, s{S_WAVE}, 12
    s_add_u32 s{S_MB}, s{S_MA}, 16384
    s_movk_i32 s{S_DA}, 128
    s_mov_b32 s{S_DAX}, 0
    s_mov_b32 s{S_DB}, {64*8192}
    s_movk_i32 s{S_MKA}, 2047
    s_mov_b32 s{S_MKB}, {(8<<20)-1}""")
        if o['rot']:
            a(f"    s_lshl_b32 s{S_SA}, s{S_HG}, 9\n    s_lshl_b32 s{S_SB}, s{S_HG}, 21")
        else:
            a(f"    s_mov_b32 s{S_SA}, 0\n    s_mov_b32 s{S_SB}, 0")
        a(f"""    s_waitcnt lgkmcnt(0)
    s_mov_b32 s{S_A}, s{S_PTR}
    s_mov_b32 s{S_A+1}, s{S_PTR+1}
    s_mov_b32 s{S_B}, s{S_PTR+6}
    s_mov_b32 s{S_B+1}, s{S_PTR+7}""")
        if not o['trace']: self.stamp()
        self.pa, self.pb = o['px'], o['pwq']
        for n in range(o['npre']):
            for (t, tag) in self.pro_dma(n):
                self.fill(t, tag)
        a(f"""    s_mov_b32 s{S_WS}, s{S_PTR+16}
    s_mov_b32 s{S_WS+1}, s{S_PTR+17}
    s_mov_b32 s{S_WS+2}, 0x10000000
    s_mov_b32 s{S_WS+3}, 0x20000
    s_mov_b32 s{S_OUT}, s{S_PTR+12}
    s_mov_b32 s{S_OUT+1}, s{S_PTR+13}
    s_mov_b32 s{S_OUT+2}, 0x200000
    s_mov_b32 s{S_OUT+3}, 0x20000""")
        if o['xt'] is not None:
            a(f"""    s_lshr_b32 s{S_TMP+5}, s2, 3
    s_lshl_b32 s{S_TMP+5}, s{S_TMP+5}, 2
    s_add_u32 s{S_TMP+5}, s{S_TMP+5}, s{S_WAVE}
    s_lshl_b32 s{S_TMP+5}, s{S_TMP+5}, 13
    v_lshlrev_b32 v{T+8}, 7, v{L}""")
            self.sc.vmem(f"buffer_load_dword v{T+14}, v{T+8}, s[{S_A}:{S_A+3}], s{S_TMP+5} offen{o['xt']}", 'xt')
        a(f"""    s_lshl_b32 s{S_TMP+1}, s{S_TMP}, 18
    s_lshl_b32 s{S_TMP+4}, s{S_HG}, 16
    s_add_u32 s{S_TMP+1}, s{S_TMP+1}, s{S_TMP+4}
    v_add_u32 v{V_DV}, s{S_TMP+1}, v{T+4}
    v_xor_b32 v{V_DV+1}, 64, v{V_DV}
    v_add_u32 v{V_DV+2}, {2*(8*256-1024)}, v{V_DV}
    v_add_u32 v{V_DV+3}, {3*(8*256-1024)}, v{V_DV+1}
    v_add_u32 v{V_DV+1}, {8*256-1024}, v{V_DV+1}""")
        a(f"""    v_lshl_add_u32 v{T+7}, v{T+2}, 11, v{T+6}
    s_lshl_b32 s{S_TMP+3}, s{S_C}, 8
    s_lshl_b32 s{S_TMP+4}, s{S_WAVE}, 15
    s_add_u32 s{S_TMP+3}, s{S_TMP+3}, s{S_TMP+4}
    s_lshl_b32 s{S_TMP+4}, s{S_HG}, 21
    s_add_u32 s{S_TMP+3}, s{S_TMP+3}, s{S_TMP+4}
    v_add_u32 v{V_DO}, s{S_TMP+3}, v{T+7}""")
        for i in range(1, 4):
            a(f"    v_add_u32 v{V_DO+i}, {i*(4*2048-1024)}, v{V_DO}")
        a(f"""    v_xor_b32 v{T+5}, v{T+5}, v{T+2}
    v_lshlrev_b32 v{T+5}, 4, v{T+5}
    v_lshl_add_u32 v{V_DK}, v{T+2}, 8, v{T+5}""")
        for i in range(1, 4):
            a(f"    v_xor_b32 v{V_DK+i}, {i*64}, v{V_DK}")
        a(f"""    v_and_b32 v{T}, 31, v{L}            ; q
    v_lshrrev_b32 v{T+1}, 5, v{L}         ; hi
    v_bfe_u32 v{T+2}, v{L}, 1, 3
    v_xor_b32 v{T+2}, v{T+2}, v{T+1}
    v_lshlrev_b32 v{T+2}, 4, v{T+2}
    v_lshl_add_u32 v{T+2}, v{T}, 7, v{T+2}
    v_add_u32 v{V_XA}, s{S_MA}, v{T+2}""")
        for t in range(1, 4):
            a(f"    v_xor_b32 v{V_XA+t}, {t<<5}, v{V_XA}")
        a(f"""    v_and_b32 v{T+3}, 15, v{L}
    v_xor_b32 v{T+3}, v{T+3}, v{T+1}
    v_lshlrev_b32 v{T+3}, 4, v{T+3}
    v_lshl_add_u32 v{T+3}, v{T}, 8, v{T+3}
    s_lshl_b32 s{S_TMP+3}, s{S_WAVE}, 13
    s_add_u32 s{S_TMP+3}, s{S_TMP+3}, {(16 % self.R)*SLOT}
    v_add_u32 v{V_KR}, s{S_TMP+3}, v{T+3}""")
        for t in range(1, 8):
            a(f"    v_xor_b32 v{V_KR+t}, {t<<5}, v{V_KR}")
        a(f"""    v_bfe_u32 v{T}, v{L}, 2, 2            ; r
    v_lshl_add_u32 v{T+2}, v{T+1}, 3, v{T}
    v_lshlrev_b32 v{T+2}, 8, v{T+2}       ; (8hi+r)*256
    v_lshl_add_u32 v{T+2}, v{T}, 6, v{T+2}
    v_bfe_u32 v{T+3}, v{L}, 4, 1
    v_lshl_add_u32 v{T+2}, v{T+3}, 5, v{T+2}
    v_and_b32 v{T+3}, 1, v{L}
    v_lshl_add_u32 v{T+2}, v{T+3}, 4, v{T+2}
    v_bfe_u32 v{T+3}, v{L}, 1, 1
    v_lshl_add_u32 v{T+2}, v{T+3}, 3, v{T+2}
    v_add_u32 v{V_WA}, 16384, v{T+2}""")
        for j in range(1, 4):
            a(f"    v_xor_b32 v{V_WA+j}, {j<<6}, v{V_WA}")
        a(f"""    v_lshlrev_b32 v{V_L16}, 4, v{L}
    s_mov_b32 s3, 0
    s_mov_b32 s4, 0
    s_mov_b32 s{S_BASE}, 0
    s_mov_b32 s{S_NBASE}, {SLOT}
    s_mov_b32 s{S_DELTA}, {SLOT}""")
        a(f"""    s_lshl_b32 s{S_SP}, s{S_BR}, 9
    s_andn2_b32 s{S_TMP+3}, s{S_BH}, 7
    s_add_u32 s{S_SP}, s{S_SP}, s{S_TMP+3}
    s_lshl_b32 s{S_SP}, s{S_SP}, 11
    s_add_u32 s{S_SP}, s{S_SP}, {WS_P}
    s_and_b32 s{S_TMP+3}, s2, 7
    s_lshl_b32 s{S_TMP+3}, s{S_TMP+3}, 2
    s_add_u32 s{S_TMP+3}, s{S_TMP+3}, s{S_BG}
    s_lshl_b32 s{S_TMP+3}, s{S_TMP+3}, 2
    s_add_u32 s{S_TMP+3}, s{S_TMP+3}, s{S_WAVE}
    s_lshl_b32 s{S_TMP+3}, s{S_TMP+3}, 7
    s_add_u32 s{S_TMP+3}, s{S_TMP+3}, {WS_F1}
    s_add_u32 s{S_F1}, s{S_WS}, s{S_TMP+3}
    s_addc_u32 s{S_F1+1}, s{S_WS+1}, 0""")
        for i in range(64):
            a(f"    v_accvgpr_write_b32 a{A_OUT+i}, 0")
        a(f"""    s_or_b32 s{S_TMP+3}, s2, s{S_WAVE}
    s_cmp_lg_u32 s{S_TMP+3}, 0
    s_cbranch_scc1 L_noleader
    s_load_dword s{S_TMP+3}, s[{S_WS}:{S_WS+1}], {WS_E} glc
    s_waitcnt lgkmcnt(0)
    s_add_u32 s{S_TMP+3}, s{S_TMP+3}, 1
    s_max_u32 s{S_TMP+3}, s{S_TMP+3}, 1
    v_mov_b32 v{T+8}, s{S_TMP+3}
    v_mov_b32 v{T+9}, 0
    s_mov_b64 exec, 1
    global_store_dword v{T+9}, v{T+8}, s[{S_PTR+14}:{S_PTR+15}] sc1
    global_store_dword v{T+9}, v{T+8}, s[{S_WS}:{S_WS+1}] sc1
    s_mov_b64 exec, -1
L_noleader:""")

    def pro_dma(self, n):
        return [(f"s_add_u32 s{S_M0A}, s{S_MA}, {n*SLOT}\n    s_add_u32 s{S_M0B}, s{S_MB}, {n*SLOT}", None)] + self.dma_ops(('st', n), self.pa, self.pb)

    def fill(self, text, tag):
        if callable(text): text()
        elif tag is not None: self.sc.vmem(text, tag)
        else: self.a("    " + text)

    def dma_ops(self, tag, pa, pb):
        ops = [(f"s_mov_b32 m0, s{S_M0A}", None), (f"s_add_u32 s{S_TMP+7}, s{S_SA}, s{S_DA}", None)]
        for i in range(4):
            ops.append((f"buffer_load_dwordx4 v{V_DA+i}, s[{S_A}:{S_A+3}], s{S_SA} offen offset:{1024*i}{pa} lds", tag))
        ops += [(f"s_mov_b32 m0, s{S_M0B}", None), (f"s_and_b32 s{S_SA}, s{S_TMP+7}, s{S_MKA}", None)]
        for i in range(4):
            ops.append((f"buffer_load_dwordx4 v{V_DB+i}, s[{S_B}:{S_B+3}], s{S_SB} offen offset:{1024*i}{pb} lds", tag))
        ops += [(f"s_add_u32 s{S_SB}, s{S_SB}, s{S_DB}", None), (f"s_xor_b32 s{S_DA}, s{S_DA}, s{S_DAX}", None),
                (f"s_and_b32 s{S_SB}, s{S_SB}, s{S_MKB}", None)]
        return ops

    def reads(self, t, fset):
        fb = A_FR + 20 * fset
        ops = [(f"ds_read_b128 a[{fb}:{fb+3}], v{V_XA+t}", ('x', fset))]
        for j in range(4):
            for u in range(2):
                r = fb + 4 + 4 * j + 2 * u
                ops.append((f"ds_read_b64_tr_b16 a[{r}:{r+1}], v{V_WA+j} offset:{(16*t+4*u)*256}", ('w', fset, j)))
        return ops

    def kstep(self, kind, acc, fset, first, reads, gapf, bump=False):
        a = self.a; sc = self.sc
        gaps = [[] for _ in range(4)]
        ri = 0
        for g, n in enumerate([3, 2, 2, 2]):
            for _ in range(n):
                if ri < len(reads):
                    gaps[g].append(('ds',) + reads[ri]); ri += 1
            if bump:
                gaps[g].append(('f', f"v_add_u32 v{V_WA+g}, s{S_DELTA}, v{V_WA+g}", None))
                gaps[g].append(('f', f"v_add_u32 v{V_XA+g}, s{S_DELTA}, v{V_XA+g}", None))
            for f in gapf[g]:
                gaps[g].append(('f',) + f)
        fb = A_FR + 20 * fset
        for j in range(4):
            sc.need_lg({('x', fset), ('w', fset, j)})
            x = f"a[{fb}:{fb+3}]"; w = f"a[{fb+4+4*j}:{fb+7+4*j}]"
            d = f"v[{acc+16*j}:{acc+16*j+15}]"
            c = "0" if first else d
            a(f"    v_mfma_f32_32x32x16_bf16 {d}, {w}, {x}, {c}" if kind == 'g1' else
              f"    v_mfma_f32_32x32x16_bf16 {d}, {x}, {w}, {c}")
            for op in gaps[j]:
                if op[0] == 'ds': sc.ds(op[1], op[2])
                else: self.fill(op[1], op[2])

    @staticmethod
    def spread(ops, ngaps, g0=0):
        gaps = [[] for _ in range(ngaps)]
        nv = sum(1 for o in ops if o[1] is not None)
        k = 0; pend = []
        last = g0
        for o in ops:
            if o[1] is None:
                pend.append(o)
            else:
                g = g0 + (k * (ngaps - g0)) // nv + (1 if (ngaps - g0) >= 2 * nv else 0)
                g = min(g, ngaps - 1)
                gp = max(last, g - 1) if pend else g
                gaps[gp] += pend; pend = []
                gaps[g].append(o); last = g; k += 1
        gaps[last] += pend
        return gaps

    def ring_adv(self):
        top = self.R * SLOT
        return [(f"s_add_u32 s{S_M0A}, s{S_MA}, s{S_BASE}", None), (f"s_add_u32 s{S_M0B}, s{S_MB}, s{S_BASE}", None),
                (f"s_mov_b32 s{S_BASE}, s{S_NBASE}", None), (f"s_add_u32 s{S_NBASE}, s{S_NBASE}, {SLOT}", None),
                (f"s_cmp_eq_u32 s{S_NBASE}, {top}\n    s_cselect_b32 s{S_NBASE}, 0, s{S_NBASE}", None),
                (f"s_sub_u32 s{S_DELTA}, s{S_NBASE}, s{S_BASE}", None)]

    def step(self, kind, n, acc3, acc, first, dma=True, k3=True, rest=True, extra=None, pa=None, pb=None, pre=None):
        a = self.a; sc = self.sc
        sc.all_lg()
        sc.need_vm({('st', n + 1)})
        a("    s_barrier")
        if self.o['trace']:
            a(f"""    v_mov_b32 v61, s100
    v_mov_b32 v63, s6
    v_cmp_eq_u32 vcc, s4, v{V_LANE}
    s_memrealtime s[100:101]
    s_memtime s[6:7]
    s_add_u32 s4, s4, 1
    v_cndmask_b32 v60, v60, v61, vcc
    v_cndmask_b32 v62, v62, v63, vcc""")
        if pre: pre()
        ra = self.ring_adv()
        nk = (1 if k3 else 0) + (3 if rest else 0)
        ng = 4 * nk
        gaps = [[] for _ in range(ng)]
        gaps[0] += ra[:2]
        if dma:
            gd = self.spread(self.dma_ops(('st', n + self.R), self.pa if pa is None else pa, self.pb if pb is None else pb), ng)
            for g in range(ng): gaps[g] += gd[g]
        for i, r in enumerate(ra[2:]):
            gaps[min(2 + 2 * i if ng > 12 else i, ng - 1)].append(r)
        ex = extra if extra else [[], [], [], []]
        if not k3: ex = ex[1:]
        for kk in range(nk):
            e = ex[kk]
            per = -(-len(e) // 4) if e else 0
            for g in range(4):
                gaps[4 * kk + g] += e[g * per:(g + 1) * per]
        pi = 0
        if k3:
            self.kstep(kind, acc3, 1, False, self.reads(0, 0) if rest else [], gaps[0:4]); pi = 1
        elif rest:
            for op in self.reads(0, 0): sc.ds(*op)
        if rest:
            for t in range(3):
                self.kstep(kind, acc, t & 1, first and t == 0, self.reads(t + 1, (t + 1) & 1), gaps[4*pi:4*pi+4], bump=(t == 2)); pi += 1

    def g1(self):
        a = self.a; sc = self.sc; o = self.o; R = self.R
        for n in range(o['npre'], o['npre2']):
            for (t, tag) in self.pro_dma(n):
                self.fill(t, tag)
        sc.need_vm({('st', 0)})
        a("    s_barrier")
        self.stamp()
        for op in self.reads(0, 0): sc.ds(*op)
        rest = []
        for n in range(o['npre2'], R): rest += self.pro_dma(n)
        gaps = self.spread(rest, 12) if rest else [[] for _ in range(12)]
        for t in range(3):
            self.kstep('g1', V_ACC, t & 1, t == 0, self.reads(t + 1, (t + 1) & 1), gaps[4*t:4*t+4], bump=(t == 2))
        same = o['px'] == o['pk'] == o['pv'] and o['pwq'] == o['pk'] == o['pwo']
        nK = 16 - R
        def sw_k():
            a(f"""    s_mov_b32 s{S_A}, s{S_PTR+2}
    s_mov_b32 s{S_A+1}, s{S_PTR+3}
    s_mov_b32 s{S_A+2}, 0x400000
    s_mov_b32 s{S_B}, s{S_PTR+2}
    s_mov_b32 s{S_B+1}, s{S_PTR+3}
    s_mov_b32 s{S_B+2}, 0x400000
    s_lshl_b32 s{S_SA}, s{S_BH}, 13
    s_add_u32 s{S_SB}, s{S_SA}, 4096
    s_lshl_b32 s{S_MA}, s{S_WAVE}, 13
    s_add_u32 s{S_MB}, s{S_MA}, 4096
    v_mov_b32 v{V_T+9}, 0""")
            for i in range(4):
                a(f"    v_mov_b32 v{V_DA+i}, v{V_DK+i}\n    v_mov_b32 v{V_DB+i}, v{V_DK+i}")
            a(f"    global_load_dword v{V_NONCE}, v{V_T+9}, s[{S_PTR+14}:{S_PTR+15}] sc1")
        def sw_g2():
            a(f"""    s_mov_b32 s{S_A}, s{S_PTR+4}
    s_mov_b32 s{S_A+1}, s{S_PTR+5}
    s_mov_b32 s{S_B}, s{S_PTR+8}
    s_mov_b32 s{S_B+1}, s{S_PTR+9}
    s_mov_b32 s{S_B+2}, 0x800000
    s_lshl_b32 s{S_SA}, s{S_C}, 13
    s_lshl_b32 s{S_SB}, s{S_C}, 18
    s_movk_i32 s{S_DA}, 128
    s_movk_i32 s{S_DAX}, {128 ^ 8064}
    s_mov_b32 s{S_DB}, {64*2048}
    s_mov_b32 s{S_MKA}, 65535
    s_mov_b32 s{S_MKB}, {(2<<20)-1}
    s_lshl_b32 s{S_MA}, s{S_WAVE}, 12
    s_add_u32 s{S_MB}, s{S_MA}, 16384""")
            for i in range(4):
                a(f"    v_mov_b32 v{V_DA+i}, v{V_DV+i}\n    v_mov_b32 v{V_DB+i}, v{V_DO+i}")
        ren = lambda t: ('st', t[1] - 1) if isinstance(t, tuple) and t[0] == 'st' else t
        if same:
            a(f"    s_mov_b32 s{S_CNT}, 0\nL_g1_loop:")
            a(f"""    s_cmp_eq_u32 s{S_CNT}, {nK}
    s_cbranch_scc1 L_sw_k
    s_cmp_eq_u32 s{S_CNT}, {nK+1}
    s_cbranch_scc1 L_sw_g2
L_g1_body:""")
            loop_body(a, sc, lambda: self.step('g1', 0, V_ACC, V_ACC, False), ren)
            a(f"""    s_add_u32 s{S_CNT}, s{S_CNT}, 1
    s_cmp_lt_u32 s{S_CNT}, 15
    s_cbranch_scc1 L_g1_loop""")
            sc.vm = [('st', t[1] + 14) if isinstance(t, tuple) else t for t in sc.vm]
            self.tail_blocks = [("L_sw_k", sw_k), ("L_sw_g2", sw_g2)]
        else:
            a(f"    s_mov_b32 s{S_CNT}, 0\nL_g1_loop:")
            loop_body(a, sc, lambda: self.step('g1', 0, V_ACC, V_ACC, False), ren)
            a(f"""    s_add_u32 s{S_CNT}, s{S_CNT}, 1
    s_cmp_lt_u32 s{S_CNT}, {nK}
    s_cbranch_scc1 L_g1_loop""")
            sc.vm = [('st', t[1] + nK - 1) if isinstance(t, tuple) else t for t in sc.vm]
            sw_k(); sc.vm.append('nonce')
            self.step('g1', nK, V_ACC, V_ACC, False, pa=o['pk'], pb=o['pk'])
            sw_g2()
            self.pa, self.pb = o['pv'], o['pwo']
            a(f"    s_mov_b32 s{S_CNT}, {nK+1}\nL_g1_loop2:")
            sc.vm = [('st', t[1] - (nK + 1)) if isinstance(t, tuple) else t for t in sc.vm]
            loop_body(a, sc, lambda: self.step('g1', 0, V_ACC, V_ACC, False), ren)
            a(f"""    s_add_u32 s{S_CNT}, s{S_CNT}, 1
    s_cmp_lt_u32 s{S_CNT}, 15
    s_cbranch_scc1 L_g1_loop2""")
            sc.vm = [('st', t[1] + 14) if isinstance(t, tuple) else t for t in sc.vm]
            self.tail_blocks = []
        self.pa, self.pb = o['pv'], o['pwo']
        self.step('g1', 15, V_ACC, V_ACC, False, rest=False)
        self.stamp()

    def softmax(self):
        a = self.a; sc = self.sc
        KF = 128; SA = 160; M = V_T
        for t in range(8):
            sc.ds(f"ds_read_b128 v[{KF+4*t}:{KF+4*t+3}], v{V_KR+t}", ('k', t))
        a(f"    s_lshl_b32 s{S_TMP}, s{S_HG}, 6")
        for g in range(4):
            a(f"    v_add_u32 v{V_XA+g}, s{S_DELTA}, v{V_XA+g}")
            a(f"    v_add_u32 v{V_WA+g}, s{S_DELTA}, v{V_WA+g}")
            a(f"    v_xor_b32 v{V_WA+g}, s{S_TMP}, v{V_WA+g}")
        for j in range(4):
            for i in range(8):
                a(f"    v_cvt_pk_bf16_f32 v{V_TP+8*j+i}, v{V_ACC+16*j+2*i}, v{V_ACC+16*j+2*i+1}")
        sc.all_lg()
        for t in range(8):
            c = "0" if t == 0 else f"v[{SA}:{SA+15}]"
            a(f"    v_mfma_f32_32x32x16_bf16 v[{SA}:{SA+15}], v[{KF+4*t}:{KF+4*t+3}], v[{V_TP+4*t}:{V_TP+4*t+3}], {c}")
        a(f"""    v_readfirstlane_b32 s{S_NONCE}, v{V_NONCE}
    s_mov_b32 s{S_TMP+1}, 0x3e0293ee
    s_lshl_b32 s{S_TMP+2}, s{S_C}, 11
    s_add_u32 s{S_TMP+2}, s{S_TMP+2}, s{S_SP}
    s_cmp_eq_u32 s{S_NONCE}, 0
    s_cbranch_scc1 L_nonce_spin
L_nonce_ok:
    s_nop 7""")
        a(f"    v_max3_f32 v{M}, v{SA}, v{SA+1}, v{SA+2}")
        for i in range(3, 15, 2):
            a(f"    v_max3_f32 v{M}, v{M}, v{SA+i}, v{SA+i+1}")
        a(f"""    v_max_f32 v{M}, v{M}, v{SA+15}
    v_mov_b32 v{M+1}, v{M}
    s_nop 1
    v_permlane32_swap_b32 v{M}, v{M+1}
    v_max_f32 v{M}, v{M}, v{M+1}
    v_mul_f32 v{M}, s{S_TMP+1}, v{M}""")
        for i in range(16):
            a(f"    v_fma_f32 v{SA+i}, v{SA+i}, s{S_TMP+1}, -v{M}")
        for i in range(16):
            a(f"    v_exp_f32 v{SA+i}, v{SA+i}")
        a(f"    v_add_f32 v{M+2}, v{SA}, v{SA+1}\n    v_add_f32 v{M+3}, v{SA+2}, v{SA+3}")
        for i in range(4, 16, 2):
            a(f"    v_add_f32 v{M+2}, v{M+2}, v{SA+i}\n    v_add_f32 v{M+3}, v{M+3}, v{SA+i+1}")
        a(f"""    v_add_f32 v{M+2}, v{M+2}, v{M+3}
    v_mov_b32 v{M+3}, v{M+2}
    s_nop 1
    v_permlane32_swap_b32 v{M+2}, v{M+3}
    v_add_f32 v{M+2}, v{M+2}, v{M+3}
    v_rcp_f32 v{M+2}, v{M+2}
    s_nop 0""")
        for i in range(16):
            a(f"    v_mul_f32 v{SA+i}, v{SA+i}, v{M+2}")
        for i in range(8):
            a(f"    v_cvt_pk_bf16_f32 v{KF+i}, v{SA+2*i}, v{SA+2*i+1}")
        sc.vmem(f"buffer_store_dwordx4 v[{KF}:{KF+3}], v{V_L16}, s[{S_WS}:{S_WS+3}], s{S_TMP+2} offen sc1", 'pst')
        sc.vmem(f"buffer_store_dwordx4 v[{KF+4}:{KF+7}], v{V_L16}, s[{S_WS}:{S_WS+3}], s{S_TMP+2} offen offset:1024 sc1", 'pst')
        a(f"    s_mov_b32 s{S_PH}, s{S_C}")
        self.stamp()

    def g2(self):
        a = self.a; sc = self.sc; R = self.R
        N0 = 17
        acc = lambda h: V_ACC + 64 * (h & 1)
        def cvt(h):
            return [[(f"v_cvt_pk_bf16_f32 v{V_TP+32*(h&1)+8*j+i}, v{acc(h)+16*j+2*i}, v{acc(h)+16*j+2*i+1}", None) for i in range(8)] for j in range(4)]
        def outm(h, tiles=range(4)):
            def f():
                sc.need_vm({('P', h & 1)})
                for j in tiles:
                    for t in range(2):
                        o = A_OUT + 16 * j; tp = V_TP + 32 * (h & 1) + 8 * j + 4 * t; pf = A_PF + 8 * (h & 1) + 4 * t
                        a(f"    v_mfma_f32_32x32x16_bf16 a[{o}:{o+15}], v[{tp}:{tp+3}], a[{pf}:{pf+3}], a[{o}:{o+15}]")
            return f
        def pload(h):
            r = A_PF + 8 * (h & 1)
            return [(f"s_lshl_b32 s{S_TMP+6}, s{S_PH}, 11", None), (f"s_add_u32 s{S_PH}, s{S_PH}, 1", None),
                    (f"s_add_u32 s{S_TMP+6}, s{S_TMP+6}, s{S_SP}", None), (f"s_and_b32 s{S_PH}, s{S_PH}, 7", None),
                    (f"buffer_load_dwordx4 a[{r}:{r+3}], v{V_L16}, s[{S_WS}:{S_WS+3}], s{S_TMP+6} offen sc1", ('P', h & 1)),
                    (f"buffer_load_dwordx4 a[{r+4}:{r+7}], v{V_L16}, s[{S_WS}:{S_WS+3}], s{S_TMP+6} offen offset:1024 sc1", ('P', h & 1))]
        def flagstore():
            sc.need_vm({'pst'})
            a(f"""    s_lshl_b32 s{S_TMP+6}, s{S_C}, 2
    v_mov_b32 v{V_T+8}, s{S_NONCE}
    v_mov_b32 v{V_T+9}, s{S_TMP+6}
    s_mov_b64 exec, 1""")
            sc.vmem(f"global_store_dword v{V_T+9}, v{V_T+8}, s[{S_F1}:{S_F1+1}] sc1", 'fst')
            sc.vmem(f"global_load_dword v{V_T+15}, v{V_T+9}, s[{S_PTR+14}:{S_PTR+15}]", 'pad')
            a("    s_mov_b64 exec, -1")
        poll = (f"s_load_dwordx8 s[{S_FL}:{S_FL+7}], s[{S_F1}:{S_F1+1}], 0 glc", None)
        self.lblc = 0
        def gstep(s, dma=True, rest=True, loop=False):
            m = s // 2
            ex = [[], [], [], []]
            pre = None
            if s % 2 == 0 and s >= 2:
                c = cvt(m - 1)
                def pre():
                    i = self.lblc; self.lblc += 1
                    if loop and s == 4:
                        a(f"    s_cmp_eq_u32 s{S_CNT}, 0\n    s_cbranch_scc1 L_chk\nL_chk_ok:")
                    if loop:
                        a(f"    s_cmp_eq_u32 s{S_CNT}, 0\n    s_cbranch_scc1 L_skipout{s}")
                    outm(m - 3)()
                    if loop:
                        a(f"L_skipout{s}:")
                ex[0] = pload(m - 1) + c[0]
                ex[1] = c[1]; ex[2] = c[2]; ex[3] = c[3]
            if loop and s == 3:
                ex[1] = [poll]
            if s == 0:
                ex[2] = [(flagstore, None)]
            first = (s + 1) % 2 == 0
            self.step('g2', N0 + s, acc(s // 2), acc((s + 1) // 2), first, dma=dma, k3=(s >= 0), rest=rest, extra=ex, pre=pre)
        gstep(-1); gstep(0); gstep(1)
        a(f"    s_mov_b32 s{S_CNT}, 0\nL_g2_loop:")
        nlast = 15 - R
        def body():
            for s in range(2, 6):
                if (nlast + 1 - 2) % 4 == s - 2:
                    a(f"""    s_cmp_eq_u32 s{S_CNT}, {(nlast + 1 - 2) // 4}
    s_cselect_b32 s{S_A+2}, 0, s{S_A+2}
    s_cselect_b32 s{S_B+2}, 0, s{S_B+2}""")
                gstep(s, loop=True)
        ren = lambda t: ('st', t[1] - 4) if isinstance(t, tuple) and t[0] == 'st' else t
        loop_body(a, sc, body, ren)
        a(f"""    s_add_u32 s{S_CNT}, s{S_CNT}, 1
    s_cmp_lt_u32 s{S_CNT}, 3
    s_cbranch_scc1 L_g2_loop""")
        sc.vm = [('st', t[1] + 8) if isinstance(t, tuple) and t[0] == 'st' else t for t in sc.vm]
        gstep(14, dma=False)
        def pre15():
            outm(5)()
        ex = [pload(7), [], [], []]
        self.step('g2', N0 + 15, acc(7), acc(7), False, dma=False, rest=False, extra=ex, pre=pre15)
        outm(6)()
        c = cvt(7)
        a("    s_nop 3")
        for j in (1, 2, 3, 0):
            for (t, _) in c[j]: a("    " + t)
        a("    s_nop 0")
        outm(7, (1, 2, 3, 0))()
        self.stamp()

    def final(self):
        a = self.a; sc = self.sc
        T = V_T
        a(f"""    s_lshl_b32 s{S_TMP}, s{S_BR}, 2
    s_add_u32 s{S_TMP}, s{S_TMP}, s{S_BG}
    s_lshl_b32 s{S_TMP}, s{S_TMP}, 3
    s_add_u32 s{S_TMP}, s{S_TMP}, s{S_C}        ; grp
    s_lshl_b32 s{S_TMP+1}, s{S_TMP}, 17
    s_lshl_b32 s{S_TMP+2}, s{S_WAVE}, 11
    s_add_u32 s{S_TMP+1}, s{S_TMP+1}, s{S_TMP+2}
    s_add_u32 s{S_TMP+1}, s{S_TMP+1}, {WS_PART}
    s_lshl_b32 s{S_TMP+2}, s{S_HG}, 13
    s_add_u32 s{S_TMP+2}, s{S_TMP+2}, s{S_TMP+1}  ; + src""")
        for i in (1, 2, 3):
            a(f"""    s_xor_b32 s{S_TMP+3}, s{S_HG}, {i}
    s_lshl_b32 s{S_TMP+3}, s{S_TMP+3}, 15
    s_add_u32 s{S_TMP+3}, s{S_TMP+3}, s{S_TMP+2}""")
            b = 64 + 16 * i
            for r in range(16):
                a(f"    v_accvgpr_read_b32 v{b+r}, a{A_OUT+16*i+r}")
            p = 128 + 8 * i
            for r in range(8):
                a(f"    v_cvt_pk_bf16_f32 v{p+r}, v{b+2*r}, v{b+2*r+1}")
            a(f"    buffer_store_dwordx4 v[{p}:{p+3}], v{V_L16}, s[{S_WS}:{S_WS+3}], s{S_TMP+3} offen sc1")
            a(f"    buffer_store_dwordx4 v[{p+4}:{p+7}], v{V_L16}, s[{S_WS}:{S_WS+3}], s{S_TMP+3} offen offset:1024 sc1")
        a(f"""    s_lshl_b32 s{S_TMP+4}, s{S_TMP}, 11
    s_lshl_b32 s{S_TMP+5}, s{S_WAVE}, 7
    s_add_u32 s{S_TMP+4}, s{S_TMP+4}, s{S_TMP+5}
    s_add_u32 s{S_TMP+4}, s{S_TMP+4}, {WS_F2}
    v_xor_b32 v{T}, s{S_HG}, v{V_LANE}
    v_lshlrev_b32 v{T}, 9, v{T}
    s_lshl_b32 s{S_TMP+5}, s{S_HG}, 2
    v_add_u32 v{T}, s{S_TMP+5}, v{T}
    v_mov_b32 v{T+1}, s{S_NONCE}
    s_lshl_b32 s{S_TMP+5}, s{S_HG}, 9
    s_add_u32 s{S_TMP+5}, s{S_TMP+5}, s{S_TMP+4}
    s_add_u32 s{S_F2}, s{S_WS}, s{S_TMP+5}
    s_addc_u32 s{S_F2+1}, s{S_WS+1}, 0""")
        for r in range(16):
            a(f"    v_accvgpr_read_b32 v{64+r}, a{A_OUT+r}")
        a(f"""    v_and_b32 v{T+2}, 31, v{V_LANE}
    v_lshlrev_b32 v{T+2}, 12, v{T+2}
    v_lshrrev_b32 v{T+3}, 5, v{V_LANE}
    v_lshl_add_u32 v{T+2}, v{T+3}, 4, v{T+2}
    s_lshr_b32 s{S_TMP+6}, s{S_BH}, 5
    s_lshl_b32 s{S_TMP+6}, s{S_TMP+6}, 17
    s_lshl_b32 s{S_TMP+7}, s{S_BR}, 11
    s_add_u32 s{S_TMP+6}, s{S_TMP+6}, s{S_TMP+7}
    s_lshl_b32 s{S_TMP+7}, s{S_C}, 8
    s_add_u32 s{S_TMP+6}, s{S_TMP+6}, s{S_TMP+7}
    s_lshl_b32 s{S_TMP+7}, s{S_HG}, 6
    s_add_u32 s{S_TMP+6}, s{S_TMP+6}, s{S_TMP+7}
    s_lshl_b32 s{S_TMP+3}, s{S_HG}, 15
    s_add_u32 s{S_TMP+1}, s{S_TMP+1}, s{S_TMP+3}   ; group base + w + dst=hg
    s_waitcnt vmcnt(0)
    s_mov_b64 exec, 14
    buffer_store_dword v{T+1}, v{T}, s[{S_WS}:{S_WS+3}], s{S_TMP+4} offen sc1
    s_mov_b64 exec, -1""")
        a(f"""L_poll2:
    s_add_u32 s3, s3, 1
    s_cmp_gt_u32 s3, 0x100000
    s_cbranch_scc1 L_end
    s_load_dwordx4 s[{S_FL}:{S_FL+3}], s[{S_F2}:{S_F2+1}], 0 glc
    s_mov_b32 s{S_TMP+3}, 0
    s_waitcnt lgkmcnt(0)""")
        for i in range(4):
            a(f"""    s_cmp_eq_u32 s{S_FL+i}, s{S_NONCE}
    s_addc_u32 s{S_TMP+3}, s{S_TMP+3}, 0""")
        a(f"""    s_cmp_eq_u32 s{S_HG}, 0
    s_cselect_b32 s{S_TMP+2}, s{S_FL}, s{S_FL+1}
    s_cmp_eq_u32 s{S_HG}, 2
    s_cselect_b32 s{S_TMP+2}, s{S_FL+2}, s{S_TMP+2}
    s_cmp_eq_u32 s{S_HG}, 3
    s_cselect_b32 s{S_TMP+2}, s{S_FL+3}, s{S_TMP+2}
    s_cmp_eq_u32 s{S_TMP+2}, s{S_NONCE}
    s_subb_u32 s{S_TMP+3}, s{S_TMP+3}, 0
    s_cmp_lg_u32 s{S_TMP+3}, 3
    s_cbranch_scc1 L_poll2""")
        self.stamp()
        for i in (1, 2, 3):
            p = 128 + 8 * i
            a(f"""    s_xor_b32 s{S_TMP+3}, s{S_HG}, {i}
    s_lshl_b32 s{S_TMP+3}, s{S_TMP+3}, 13
    s_add_u32 s{S_TMP+3}, s{S_TMP+3}, s{S_TMP+1}
    buffer_load_dwordx4 v[{p}:{p+3}], v{V_L16}, s[{S_WS}:{S_WS+3}], s{S_TMP+3} offen sc1
    buffer_load_dwordx4 v[{p+4}:{p+7}], v{V_L16}, s[{S_WS}:{S_WS+3}], s{S_TMP+3} offen offset:1024 sc1""")
        for i in (1, 2, 3):
            p = 128 + 8 * i
            a(f"    s_waitcnt vmcnt({2*(3-i)})")
            for r in range(8):
                a(f"""    v_lshlrev_b32 v{T+4}, 16, v{p+r}
    v_and_b32 v{T+5}, 0xffff0000, v{p+r}
    v_add_f32 v{64+2*r}, v{64+2*r}, v{T+4}
    v_add_f32 v{65+2*r}, v{65+2*r}, v{T+5}""")
        for r in range(8):
            a(f"    v_cvt_pk_bf16_f32 v{128+r}, v{64+2*r}, v{65+2*r}")
        a(f"""    buffer_store_dwordx4 v[128:131], v{T+2}, s[{S_OUT}:{S_OUT+3}], s{S_TMP+6} offen
    buffer_store_dwordx4 v[132:135], v{T+2}, s[{S_OUT}:{S_OUT+3}], s{S_TMP+6} offen offset:32""")
        if self.o['stamps']:
            a("    s_waitcnt vmcnt(0)")
            self.stamp()
            a(f"""    s_waitcnt lgkmcnt(0)
    s_cmp_lg_u32 s{S_WAVE}, 0
    s_cbranch_scc1 L_end
    s_lshl_b32 s{S_TMP}, s2, 5
    s_add_u32 s{S_TMP}, s{S_TMP}, {WS_TS}
    v_mov_b32 v{T+8}, s{S_TMP}
    s_mov_b64 exec, 1""")
            for i in range(8):
                a(f"    v_mov_b32 v{T}, s{S_ST+2*min(i, self.nst-1)}")
                a(f"    buffer_store_dword v{T}, v{T+8}, s[{S_WS}:{S_WS+3}], 0 offen offset:{4*i}")
            if self.o['trace']:
                a(f"""    s_mov_b64 exec, -1
    s_lshl_b32 s{S_TMP}, s2, 9
    s_add_u32 s{S_TMP}, s{S_TMP}, {WS_TS + 8192}
    v_lshlrev_b32 v{T+8}, 2, v{V_LANE}
    buffer_store_dword v60, v{T+8}, s[{S_WS}:{S_WS+3}], s{S_TMP} offen
    buffer_store_dword v62, v{T+8}, s[{S_WS}:{S_WS+3}], s{S_TMP} offen offset:256""")
        a("    s_endpgm")

    def rare(self):
        a = self.a
        for lbl, fn in self.tail_blocks:
            a(f"{lbl}:"); fn(); a("    s_branch L_g1_body")
        a(f"""L_nonce_spin:
    s_add_u32 s3, s3, 1
    s_cmp_gt_u32 s3, 0x100000
    s_cbranch_scc1 L_end
    v_mov_b32 v{V_T+9}, 0
    global_load_dword v{V_NONCE}, v{V_T+9}, s[{S_PTR+14}:{S_PTR+15}] sc1
    s_waitcnt vmcnt(0)
    v_readfirstlane_b32 s{S_NONCE}, v{V_NONCE}
    s_nop 3
    s_cmp_eq_u32 s{S_NONCE}, 0
    s_cbranch_scc1 L_nonce_spin
    s_branch L_nonce_ok
L_chk:""")
        for i in range(8):
            a(f"    s_cmp_lg_u32 s{S_FL+i}, s{S_NONCE}\n    s_cbranch_scc1 L_chk_again")
        a(f"""    s_branch L_chk_ok
L_chk_again:
    s_add_u32 s3, s3, 1
    s_cmp_gt_u32 s3, 0x100000
    s_cbranch_scc1 L_end
    s_load_dwordx8 s[{S_FL}:{S_FL+7}], s[{S_F1}:{S_F1+1}], 0 glc
    s_waitcnt lgkmcnt(0)
    s_branch L_chk
L_end:
    s_endpgm""")

    def build(self):
        self.setup(); self.g1(); self.softmax(); self.g2(); self.final(); self.rare()
        return single_file(self.a.text(), 256, 256, self.R * SLOT, 512, 102, 256)

NT = dict(px=' nt', pwq=' nt', pk=' nt', pv=' nt', pwo=' nt')
if __name__ == '__main__':
    open('v2.s', 'w').write(Gen().build())
    open('v2_st.s', 'w').write(Gen(stamps=True).build())
    open('v2_nt.s', 'w').write(Gen(**NT).build())
    open('v2_nt_st.s', 'w').write(Gen(stamps=True, **NT).build())
    open('v2_r4_st.s', 'w').write(Gen(stamps=True, R=4).build())
    open('v2_ntrot_st.s', 'w').write(Gen(stamps=True, rot=True, **NT).build())
    open('v2_tr.s', 'w').write(Gen(stamps=True, trace=True).build())
    open('v2_nt_tr.s', 'w').write(Gen(stamps=True, trace=True, **NT).build())
```
